```python
import torch

def _softmax(x, axis=-1):
    return torch.softmax(x, dim=axis)
def _gelu(x):
    return torch.nn.functional.gelu(x, approximate="tanh")
def _silu(x):
    return torch.nn.functional.silu(x)
def _sigmoid(x):
    return torch.sigmoid(x)
def _layernorm(x, axis=-1, eps=1e-5):
    m = x.mean(dim=axis, keepdim=True)
    v = x.var(dim=axis, keepdim=True, unbiased=False)
    return (x - m) / torch.sqrt(v + eps)
def _scatter_add(tgt, idx, src, axis=0):
    return tgt.clone().index_add_(axis, idx, src)
def _segment_sum(src, seg, n):
    out = torch.zeros((n,) + src.shape[1:], dtype=src.dtype)
    return out.index_add_(0, seg, src)
def _pad(x, pw):
    flat = tuple(v for pair in reversed(pw) for v in pair)
    return torch.nn.functional.pad(x, flat)

kernel_name = 'concat_heads__ssm_conv_h3__ssm_conv_h3__prompt'

def setup_inputs():

    _w = (lambda a: (lambda t: t.to(torch.bfloat16) if t.is_floating_point() else t)(torch.as_tensor(a)))
    def _A_setup():
        B, S, D = 1, 2048, 640
        ks = 4
        return {
            "q": _w((lambda *s: torch.randn(*s, dtype=torch.bfloat16) * 0.05)(B, S, D)),
            "k": _w((lambda *s: torch.randn(*s, dtype=torch.bfloat16) * 0.05)(B, S, D)),
            "v": _w((lambda *s: torch.randn(*s, dtype=torch.bfloat16) * 0.05)(B, S, D)),
            "shift_k": _w((lambda *s: torch.randn(*s, dtype=torch.bfloat16) * 0.05)(D, ks) * 0.5),
            "ssm_k": _w((lambda *s: torch.randn(*s, dtype=torch.bfloat16) * 0.05)(D, S) * (1.0 / S ** 0.5)),
            "ssm_D": _w((lambda *s: torch.randn(*s, dtype=torch.bfloat16) * 0.05)(D)),
        }
    _A_in = _A_setup()

    def _B_setup():
        B, S, D = 1, 2048, 640
        ks = 4
        return {
            "q": _w((lambda *s: torch.randn(*s, dtype=torch.bfloat16) * 0.05)(B, S, D)),
            "k": _w((lambda *s: torch.randn(*s, dtype=torch.bfloat16) * 0.05)(B, S, D)),
            "v": _w((lambda *s: torch.randn(*s, dtype=torch.bfloat16) * 0.05)(B, S, D)),
            "shift_k": _w((lambda *s: torch.randn(*s, dtype=torch.bfloat16) * 0.05)(D, ks) * 0.5),
            "ssm_k": _w((lambda *s: torch.randn(*s, dtype=torch.bfloat16) * 0.05)(D, S) * (1.0 / S ** 0.5)),
            "ssm_D": _w((lambda *s: torch.randn(*s, dtype=torch.bfloat16) * 0.05)(D)),
        }
    _B_in = _B_setup()

    return {
        "A_q": _A_in["q"],
        "A_k": _A_in["k"],
        "A_v": _A_in["v"],
        "A_shift_k": _A_in["shift_k"],
        "A_ssm_k": _A_in["ssm_k"],
        "A_ssm_D": _A_in["ssm_D"],
        "B_q": _B_in["q"],
        "B_k": _B_in["k"],
        "B_v": _B_in["v"],
        "B_shift_k": _B_in["shift_k"],
        "B_ssm_k": _B_in["ssm_k"],
        "B_ssm_D": _B_in["ssm_D"],
    }

def reference(A_q, A_k, A_v, A_shift_k, A_ssm_k, A_ssm_D, B_q, B_k, B_v, B_shift_k, B_ssm_k, B_ssm_D):
    def _A_ref(q, k, v, shift_k, ssm_k, ssm_D):
        B, S, D = q.shape
        ks = shift_k.shape[-1]
        k_pad = _pad(k, ((0, 0), (ks - 1, 0), (0, 0)))
        k_shift = torch.zeros_like(k)
        for t in range(ks):
            k_shift = k_shift + k_pad[:, t:t + S, :] * shift_k[:, ks - 1 - t][None, None, :]
        kv = k_shift * v
        L = 2 * S
        kv_pad = _pad(kv, ((0, 0), (0, S), (0, 0)))
        kf_pad = _pad(ssm_k, ((0, 0), (0, S)))
        kv_f = (lambda x, axes=(-2,-1): torch.fft.rfft2(x.float(), dim=axes))(kv_pad[:, None, :, :], axes=(1, 2))
        kf_f = (lambda x, axes=(-2,-1): torch.fft.rfft2(x.float(), dim=axes))(kf_pad[:, None, :], axes=(1, 2))
        kf_f = (lambda x, *d: x.permute(*d))(kf_f, 1, 2, 0)
        y_f = kv_f * kf_f[None, :, :, :]
        y = (lambda x, s, axes=(-2,-1): torch.fft.irfft2(x, s=s, dim=axes).to(torch.bfloat16))(y_f, (1, L), axes=(1, 2))[:, 0, :S, :]
        y = y + kv * ssm_D[None, None, :]
        return q * y

    def _B_ref(q, k, v, shift_k, ssm_k, ssm_D):
        B, S, D = q.shape
        ks = shift_k.shape[-1]
        k_pad = _pad(k, ((0, 0), (ks - 1, 0), (0, 0)))
        k_shift = torch.zeros_like(k)
        for t in range(ks):
            k_shift = k_shift + k_pad[:, t:t + S, :] * shift_k[:, ks - 1 - t][None, None, :]
        kv = k_shift * v
        L = 2 * S
        kv_pad = _pad(kv, ((0, 0), (0, S), (0, 0)))
        kf_pad = _pad(ssm_k, ((0, 0), (0, S)))
        kv_f = (lambda x, axes=(-2,-1): torch.fft.rfft2(x.float(), dim=axes))(kv_pad[:, None, :, :], axes=(1, 2))
        kf_f = (lambda x, axes=(-2,-1): torch.fft.rfft2(x.float(), dim=axes))(kf_pad[:, None, :], axes=(1, 2))
        kf_f = (lambda x, *d: x.permute(*d))(kf_f, 1, 2, 0)
        y_f = kv_f * kf_f[None, :, :, :]
        y = (lambda x, s, axes=(-2,-1): torch.fft.irfft2(x, s=s, dim=axes).to(torch.bfloat16))(y_f, (1, L), axes=(1, 2))[:, 0, :S, :]
        y = y + kv * ssm_D[None, None, :]
        return q * y

    a = _A_ref(A_q, A_k, A_v, A_shift_k, A_ssm_k, A_ssm_D)
    b = _B_ref(B_q, B_k, B_v, B_shift_k, B_ssm_k, B_ssm_D)
    return torch.concatenate([a, b], axis=-1)
```

```python
import re

def vr(base, n=1):
    return f"v{base}" if n == 1 else f"v[{base}:{base+n-1}]"
def sr(base, n=1):
    return f"s{base}" if n == 1 else f"s[{base}:{base+n-1}]"
def R(kind, base, n=1):
    return [(kind, base + i) for i in range(n)]
def V(base, n=1): return R('v', base, n)
def S(base, n=1): return R('s', base, n)

class Emit:
    def __init__(self):
        self.lines = []
        self.reset_state()
    def reset_state(self):
        self.lg = []
        self.vm = []
        self.smem = False
        self.hist = []
    def raw(self, text):
        self.lines.append(text)
    def comment(self, t):
        self.lines.append("    ; " + t)
    def label(self, name):
        self.lines.append(name + ":")
    def _slot(self, kind, reads, writes, n=1):
        for _ in range(n - 1):
            self.hist.append(('nop', (), ()))
        self.hist.append((kind, tuple(reads), tuple(writes)))
        if len(self.hist) > 40: self.hist = self.hist[-40:]
    def nop(self, n):
        while n > 0:
            k = min(n, 16)
            self.lines.append(f"    s_nop {k-1}")
            self._slot('nop', (), (), k)
            n -= k
    def wait(self, vm=None, lg=None):
        parts = []
        if vm is not None:
            parts.append(f"vmcnt({vm})")
            if len(self.vm) > vm: self.vm = self.vm[len(self.vm) - vm:] if vm else []
        if lg is not None:
            parts.append(f"lgkmcnt({lg})")
            if lg == 0: self.smem = False; self.smem_regs = set()
            if len(self.lg) > lg: self.lg = self.lg[len(self.lg) - lg:] if lg else []
        self.lines.append("    s_waitcnt " + " ".join(parts))
        self._slot('wait', (), ())
    def _need_waits(self, regs):
        regs = set(regs)
        vm = lg = None
        for i, d in enumerate(self.vm):
            if d & regs: vm = len(self.vm) - 1 - i
        for i, d in enumerate(self.lg):
            if d & regs: lg = len(self.lg) - 1 - i
        if self.smem and (getattr(self, 'smem_regs', set()) & regs): lg = 0
        if lg is not None and self.smem: lg = 0
        if vm is not None: vm = min(vm, 63)
        if lg is not None: lg = min(lg, 15)
        if vm is not None or lg is not None:
            self.wait(vm, lg)
    def _hazard(self, kind, reads, writes, srcc=()):
        need = 0
        rs, ws = set(reads), set(writes)
        for dist, (k, r, w) in enumerate(reversed(self.hist)):
            w = set(w); r_ = set(r)
            req = 0
            wv = {x for x in w if x[0] == 'v'}; wsg = {x for x in w if x[0] == 's'}
            if k == 'mfma':
                dset = wv
                if kind == 'mfma':
                    ab = rs - set(srcc)
                    if dset & ab: req = max(req, 8)
                    if dset & set(srcc) and dset != set(srcc): req = max(req, 6)
                    if (dset & ws) and dset != ws: req = max(req, 8)
                elif kind in ('valu', 'dpp', 'vmem', 'lds', 'readlane', 'permlane', 'trans'):
                    if dset & (rs | ws): req = max(req, 8)
            if k in ('valu', 'dpp', 'trans', 'permlane', 'readlane'):
                if kind == 'mfma' and wv & rs: req = max(req, 2)
                if kind == 'dpp' and wv & rs: req = max(req, 2)
                if kind == 'permlane' and wv & rs: req = max(req, 2)
                if kind == 'readlane' and wv & rs: req = max(req, 1)
                if wsg & rs:
                    if kind in ('vmem',): req = max(req, 5)
                    if kind in ('valu', 'dpp', 'trans'): req = max(req, 2)
                    if kind == 'readlane': req = max(req, 4)
                if k == 'trans' and kind in ('valu', 'dpp') and wv & rs: req = max(req, 1)
                if ('s', 'exec') in w:
                    if kind == 'dpp': req = max(req, 5)
                    if kind in ('mfma', 'readlane', 'permlane'): req = max(req, 4)
            if k == 'vmem_store_wide' and kind in ('valu', 'dpp', 'trans', 'lds', 'vmem', 'mfma'):
                if r_ & ws: req = max(req, 2)
            if k == 'salu' and ('s', 'm0') in w and ('s', 'm0') in rs: req = max(req, 1)
            if req > dist: need = max(need, req - dist)
        if need: self.nop(need)
    def op(self, kind, text, reads=(), writes=(), srcc=(), wide_store=False):
        reads = list(reads); writes = list(writes)
        self._need_waits(reads + writes)
        self._hazard(kind, reads, writes, srcc)
        self.lines.append("    " + text)
        if kind == 'lds':
            self.lg.append(set(writes))
        elif kind == 'vmem':
            self.vm.append(set(writes))
        elif kind == 'smem':
            self.smem = True
            self.smem_regs = getattr(self, 'smem_regs', set()) | set(writes)
        self._slot('vmem_store_wide' if wide_store else kind, reads, writes)
    _re = re.compile(r"\b([vs])(\d+)\b|\b([vs])\[(\d+):(\d+)\]|\b(vcc|exec|m0|scc)\b")
    @classmethod
    def regs_of(cls, s):
        out = []
        for m in cls._re.finditer(s):
            if m.group(1): out.append((m.group(1), int(m.group(2))))
            elif m.group(3): out += [(m.group(3), i) for i in range(int(m.group(4)), int(m.group(5)) + 1)]
            else: out.append(('s', m.group(6)))
        return out
    def i(self, text):
        t = text.strip()
        mn, _, rest = t.partition(" ")
        ops = [o.strip() for o in self._split(rest)]
        allr = [self.regs_of(o) for o in ops]
        flat = lambda l: [x for y in l for x in y]
        if mn.startswith("v_mfma"):
            self.op('mfma', t, reads=flat(allr[1:]), writes=allr[0], srcc=allr[3])
        elif mn.startswith("ds_read") :
            rd = flat(allr[1:]) + (allr[0] if "d16" in mn else [])
            self.op('lds', t, reads=rd, writes=allr[0])
        elif mn.startswith("ds_write") or mn.startswith("ds_add"):
            self.op('lds', t, reads=flat(allr), writes=[])
        elif mn.startswith("buffer_load") or mn.startswith("global_load"):
            if " lds" in t or "_lds_" in mn:
                self.op('vmem', t, reads=flat(allr) + [('s', 'm0')], writes=[])
            else:
                rd = flat(allr[1:]) + (allr[0] if "d16" in mn else [])
                self.op('vmem', t, reads=rd, writes=allr[0])
        elif mn.startswith("buffer_store") or mn.startswith("global_store") or mn.startswith("buffer_atomic") or mn.startswith("global_atomic"):
            wide = "x3" in mn or "x4" in mn
            self.op('vmem', t, reads=flat(allr), writes=[], wide_store=wide)
            if wide: pass
        elif mn.startswith("s_load") or mn.startswith("s_memtime") or mn.startswith("s_memrealtime") or mn.startswith("s_buffer_load"):
            self.op('smem', t, reads=flat(allr[1:]), writes=allr[0])
        elif mn in ("v_readfirstlane_b32", "v_readlane_b32"):
            self.op('readlane', t, reads=flat(allr[1:]), writes=allr[0])
        elif mn.startswith("v_permlane"):
            self.op('permlane', t, reads=flat(allr), writes=flat(allr))
        elif mn.startswith("v_cmp"):
            w = allr[0] + ([('s', 'exec')] if mn.startswith("v_cmpx") else [])
            self.op('valu', t, reads=flat(allr[1:]), writes=w)
        elif mn.startswith("v_"):
            kind = 'dpp' if "_dpp" in mn else 'valu'
            if re.match(r"v_(exp|log|rcp|rsq|sqrt|sin|cos)_", mn): kind = 'trans'
            rd = flat(allr[1:])
            if mn.startswith("v_fmac") or mn.startswith("v_dot2c") or "_dpp" in mn or mn.startswith("v_writelane") or "_sdwa" in mn: rd += allr[0]
            w = allr[0]
            if "_co_" in mn: w = allr[0] + allr[1]; rd = flat(allr[2:])
            self.op(kind, t, reads=rd, writes=w)
        elif mn.startswith("s_cmp") or mn.startswith("s_cbranch") or mn in ("s_branch", "s_barrier", "s_endpgm", "s_setprio", "s_sleep", "s_nop"):
            self.op('salu', t, reads=flat(allr), writes=[])
        elif mn.startswith("s_"):
            w = allr[0] + ([('s', 'exec')] if "saveexec" in mn else [])
            self.op('salu', t, reads=flat(allr[1:]), writes=w)
        elif mn.startswith("buffer_inv") or mn.startswith("buffer_wbl2"):
            self.op('vmem', t)
        else:
            raise ValueError("unknown instr " + t)
    @staticmethod
    def _split(rest):
        out, depth, cur = [], 0, ""
        for ch in rest:
            if ch == '[' or ch == '(': depth += 1
            if ch == ']' or ch == ')': depth -= 1
            if ch == ',' and depth == 0:
                out.append(cur); cur = ""
            else: cur += ch
        if cur.strip(): out.append(cur)
        return out
    def text(self):
        return "\n".join(self.lines) + "\n"

def kd(name, vgpr, sgpr=100, accum=None):
    accum = accum or ((vgpr + 3) // 4 * 4)
    return f""".amdhsa_kernel {name}
  .amdhsa_next_free_vgpr {vgpr}
  .amdhsa_next_free_sgpr {sgpr}
  .amdhsa_accum_offset {accum}
  .amdhsa_group_segment_fixed_size 0
  .amdhsa_kernarg_size 120
  .amdhsa_user_sgpr_count 2
  .amdhsa_user_sgpr_kernarg_segment_ptr 1
  .amdhsa_system_sgpr_workgroup_id_x 1
.end_amdhsa_kernel
"""
```

```python
import sys
from asmgen import *

NAME = "concat_heads__ssm_conv_h3__ssm_conv_h3__prompt"
HEADER = open("cdna_kernels/" + NAME + ".s.ref").read().split("; Override")[0]

def gen_k1(e, name):
    e.raw(f".globl {name}\n.p2align 8\n.type {name},@function\n{name}:")
    e.reset_state()
    e.i("s_cmp_ge_u32 s2, 640")
    e.i("s_cbranch_scc1 L_k1_end")
    e.i("s_cmp_ge_u32 s2, 320")
    e.i("s_cselect_b32 s3, 48, 0")
    e.i("s_cselect_b32 s6, 320, 0")
    e.i("s_cselect_b32 s7, 640, 0")
    e.i("s_add_u32 s4, s0, s3")
    e.i("s_addc_u32 s5, s1, 0")
    e.i("s_load_dwordx4 s[8:11], s[4:5], 8")
    e.i("s_load_dwordx2 s[12:13], s[4:5], 24")
    e.i("s_load_dwordx2 s[14:15], s[0:1], 112")
    e.i("s_sub_u32 s6, s2, s6")
    e.i("s_lshl_b32 s6, s6, 8")
    e.i("v_add_u32 v1, s6, v0")
    e.i("v_lshrrev_b32 v2, 5, v1")
    e.i("v_mul_u32_u24 v2, 13108, v2")
    e.i("v_lshrrev_b32 v2, 16, v2")
    e.i("v_mul_u32_u24 v3, 160, v2")
    e.i("v_sub_u32 v3, v1, v3")
    e.i("v_mul_u32_u24 v4, 5120, v2")
    e.i("v_lshl_add_u32 v4, v3, 3, v4")
    e.i("v_subrev_u32 v5, 3840, v4")
    e.i("v_lshlrev_b32 v6, 5, v3")
    e.i("s_mov_b32 s18, 2621440"); e.i("s_mov_b32 s19, 0x20000")
    e.i("s_mov_b32 s22, 2621440"); e.i("s_mov_b32 s23, 0x20000")
    e.i("s_mov_b32 s26, 5120"); e.i("s_mov_b32 s27, 0x20000")
    e.i("s_mov_b32 s30, 5242880"); e.i("s_mov_b32 s31, 0x20000")
    e.i("s_mov_b32 s16, s8"); e.i("s_mov_b32 s17, s9")
    e.i("s_mov_b32 s20, s10"); e.i("s_mov_b32 s21, s11")
    e.i("s_mov_b32 s24, s12"); e.i("s_mov_b32 s25, s13")
    e.i("s_mov_b32 s28, s14"); e.i("s_mov_b32 s29, s15")
    K, Vv, W = 10, 24, 32
    for r in range(3): e.i(f"buffer_load_dwordx2 {vr(K+2*r,2)}, v5, s[16:19], 0 offen offset:{1280*r}")
    for r in range(4): e.i(f"buffer_load_dwordx2 {vr(K+6+2*r,2)}, v4, s[16:19], 0 offen offset:{1280*r}")
    e.i(f"buffer_load_dwordx4 {vr(W,4)}, v6, s[24:27], 0 offen")
    e.i(f"buffer_load_dwordx4 {vr(W+4,4)}, v6, s[24:27], 0 offen offset:16")
    for r in range(4): e.i(f"buffer_load_dwordx2 {vr(Vv+2*r,2)}, v4, s[20:23], 0 offen offset:{1280*r}")
    e.i("v_lshl_add_u32 v7, v3, 2, s7")
    e.i("v_mul_u32_u24 v8, 80, v2")
    for j, dst in ((0, 40), (2, 41)):
        if j: e.i("v_add_u32 v7, 2, v7")
        e.i("v_mul_u32_u24 v9, 6554, v7")
        e.i("v_lshrrev_b32 v9, 16, v9")
        e.i("v_mul_u32_u24 v9, 40880, v9")
        e.i(f"v_lshl_add_u32 v{dst}, v7, 3, v9")
        e.i(f"v_add_u32 v{dst}, v{dst}, v8")
    e.i("v_mov_b32 v9, 0xffff0000")
    KF, WF, ACC, OUT = 44, 52, 56, 60
    for j in range(4):
        def unpack(dst, src, hi):
            if hi: e.i(f"v_and_b32 v{dst}, v9, v{src}")
            else: e.i(f"v_lshlrev_b32 v{dst}, 16, v{src}")
        for t in range(4): unpack(WF + t, W + 2*j + (t >> 1), t & 1)
        for r in range(7): unpack(KF + r, K + 2*r + (j >> 1), j & 1)
        for r in range(4):
            e.i(f"v_mul_f32 v{ACC+r}, v{KF+r}, v{WF+3}")
        for t in (2, 1, 0):
            for r in range(4):
                e.i(f"v_fmac_f32 v{ACC+r}, v{KF+r+3-t}, v{WF+t}")
        for r in range(4): unpack(KF + r, Vv + 2*r + (j >> 1), j & 1)
        for r in range(4): e.i(f"v_mul_f32 v{ACC+r}, v{ACC+r}, v{KF+r}")
        e.i(f"v_cvt_pk_bf16_f32 v{OUT+2*j}, v{ACC}, v{ACC+1}")
        e.i(f"v_cvt_pk_bf16_f32 v{OUT+2*j+1}, v{ACC+2}, v{ACC+3}")
        if j & 1:
            e.i(f"buffer_store_dwordx4 {vr(OUT+2*j-2,4)}, v{40+(j>>1)}, s[28:31], 0 offen")
    e.label("L_k1_end")
    e.i("s_endpgm")
    return 68

XS = 4368; XB = 0; XZ = 256
HS = 4128; HB = XB + 10 * XS
SB = HB + 10 * HS
CB = SB + 20480
ZB = CB + 5120
LDS_TOTAL = ZB + 544

TILES = {0: list(range(0, 8)) + list(range(23, 32)), 1: list(range(7, 24))}
CARRY_ONLY = {0: 23, 1: 7}
QUART = {0: [[24, 30, 0, 6], [23, 25, 27, 1], [26, 28, 2, 4], [29, 31, 3, 5, 7]],
         1: [[8, 10, 20, 22], [7, 9, 11, 21, 23], [12, 14, 16, 18], [13, 15, 17, 19]]}
def span_of(ty, tau):
    if ty == 0: return (0, tau) if tau < 8 else (1, tau - 24)
    return (0, tau - 8) if tau < 16 else (1, tau - 16)

class Unit:
    pass

def sched_units(e, ty, units, pool_base, pool_n, look=6, fill_per=2):
    mf = []
    for ui, u in enumerate(units):
        for d in range(32):
            ts = sorted(t for t in u['tiles'] if t >= d and (t - d) % 2 == 0)
            for t in ts:
                mf.append((ui, t, d, (t - d) // 2))
    uses = {}
    for n, (ui, t, d, b) in enumerate(mf):
        uses.setdefault((ui, 'x', d), []).append(n)
        uses.setdefault((ui, 'h', b), []).append(n)
    inst = []
    inst_of = {}
    GAP = 40
    for key, ul in uses.items():
        cur = [ul[0]]
        for n in ul[1:]:
            if n - cur[-1] > GAP:
                inst.append((cur[0], cur[-1], key, cur)); cur = [n]
            else: cur.append(n)
        inst.append((cur[0], cur[-1], key, cur))
    inst.sort(key=lambda x: x[0])
    for k, it in enumerate(inst):
        for n in it[3]: inst_of[(n, it[2][1])] = k
    free = list(range(pool_n))
    slot = {}
    nxt = 0
    fillers = []
    started = set()
    last_of_tile = {}
    for n, (ui, t, d, b) in enumerate(mf): last_of_tile[(ui, t)] = n
    def issue_load(k):
        first, last, key, _ = inst[k]
        ui, kind, idx = key
        s = free.pop(0); slot[k] = s
        r = pool_base + 4 * s
        u = units[ui]
        if kind == 'x':
            e.i(f"ds_read_b64_tr_b16 {vr(r,2)}, v{u['ax']} offset:{128*idx+32}")
            e.i(f"ds_read_b64_tr_b16 {vr(r+2,2)}, v{u['ax']} offset:{128*idx}")
        else:
            e.i(f"ds_read_b64_tr_b16 {vr(r,2)}, v{u['ah']} offset:{256*idx}")
            e.i(f"ds_read_b64_tr_b16 {vr(r+2,2)}, v{u['ah']} offset:{256*idx+32}")
    def stage1(u, t):
        a = u['acc'][t]
        D = "wave_shr:1 row_mask:0xf bank_mask:0xf bound_ctrl:0"
        ops = [lambda: e.i(f"v_add_f32_dpp v{a+2}, v{a+3}, v{a+2} {D}"),
               lambda: e.i(f"v_add_f32_dpp v{a+1}, v{a+2}, v{a+1} {D}")]
        def wr():
            e.i("s_mov_b64 exec, s[40:41]")
            e.i(f"ds_write_b128 v{u['acw']}, {vr(a,4)} offset:{16*t}")
            e.i("s_mov_b64 exec, -1")
        if t != 31 and (t + 1) in TILES[ty]: ops.append(wr)
        if t != CARRY_ONLY[ty]:
            ops.append(lambda: e.i(f"v_add_f32_dpp v{a}, v{a+1}, v{a} {D}"))
        return ops
    def stage2(u, t):
        a = u['acc'][t]
        sp, tl = span_of(ty, t)
        ops = []
        ops.append(lambda: e.i(f"v_mov_b32 v{a+2}, 0"))
        ops.append(lambda: e.i(f"ds_read_u16_d16_hi v{a+2}, v{u['axl']} offset:{128*t}"))
        if t > 0:
            ops.append(lambda: e.i(f"ds_read_b32 v{a+3}, v{u['acr']} offset:{16*(t-1)}"))
        ops2 = []
        if t > 0:
            ops2.append(lambda: e.i(f"v_add_f32 v{a}, v{a}, v{a+3}"))
        ops2.append(lambda: e.i(f"v_fmac_f32 v{a}, v{a+2}, v{u['dreg']}"))
        ops2.append(lambda: e.i(f"v_cvt_pk_bf16_f32 v{a}, v{a}, v{a}"))
        ops2.append(lambda: e.i(f"ds_write_b16 v{u['ast']}, v{a} offset:{sp*10240+1280*tl}"))
        return ops, ops2
    deferred = []
    for n, (ui, t, d, b) in enumerate(mf):
        budget = fill_per
        while nxt < len(inst) and (inst[nxt][0] <= n or (inst[nxt][0] <= n + look and free)):
            assert free, "fragment pool exhausted"
            issue_load(nxt); nxt += 1; budget -= 2
        budget = max(budget, 1)
        while budget > 0 and fillers and fillers[0][0] <= n:
            fillers.pop(0)[1](); budget -= 1
        u = units[ui]
        kx, kh = inst_of[(n, 'x')], inst_of[(n, 'h')]
        a = u['acc'][t]
        c = vr(a, 4) if (ui, t) in started else "0"
        started.add((ui, t))
        e.i(f"v_mfma_f32_16x16x32_bf16 {vr(a,4)}, {vr(pool_base+4*slot[kx],4)}, {vr(pool_base+4*slot[kh],4)}, {c}")
        for k in (kx, kh):
            if inst[k][1] == n: free.append(slot[k])
        if last_of_tile[(ui, t)] == n:
            for j, f in enumerate(stage1(u, t)): fillers.append((n + 4 + j, f))
            if t != CARRY_ONLY[ty]:
                o1, o2 = stage2(u, t)
                if u['inline']:
                    for j, f in enumerate(o1): fillers.append((n + 8 + j, f))
                    for j, f in enumerate(o2): fillers.append((n + 16 + j, f))
                else:
                    deferred.append((o1, o2))
            fillers.sort(key=lambda x: x[0])
    for _, f in fillers: f()
    return deferred

def gen_k2(e, name):
    e.raw(f".globl {name}\n.p2align 8\n.type {name},@function\n{name}:")
    e.reset_state()
    e.i("s_cmp_ge_u32 s2, 256")
    e.i("s_cbranch_scc1 L_k2_end")
    e.i("s_and_b32 s3, s2, 7")
    e.i("s_lshr_b32 s6, s2, 3")
    e.i("s_lshr_b32 s7, s3, 2")
    e.i("s_mul_i32 s4, s7, 48")
    e.i("s_add_u32 s4, s0, s4")
    e.i("s_addc_u32 s5, s1, 0")
    e.i("s_load_dwordx2 s[8:9], s[4:5], 0")
    e.i("s_load_dwordx4 s[12:15], s[4:5], 32")
    e.i("s_load_dwordx2 s[10:11], s[0:1], 96")
    e.i("s_load_dwordx2 s[16:17], s[0:1], 112")
    e.i("s_and_b32 s44, s6, 1")
    e.i("s_lshr_b32 s6, s6, 1")
    e.i("s_lshl_b32 s3, s3, 4")
    e.i("s_add_u32 s45, s3, s6")
    e.i("s_and_b32 s46, s45, 63")
    e.i("v_lshrrev_b32 v1, 6, v0")
    e.i("v_and_b32 v2, 63, v0")
    e.i("v_readfirstlane_b32 s47, v1")
    e.i("s_mov_b32 s40, 0"); e.i("s_mov_b32 s41, 0x80000000")
    for base, size in ((20, 2621440), (24, 2621440), (28, 1280), (32, 5242880), (36, 5242880)):
        e.i(f"s_mov_b32 s{base+2}, {size}"); e.i(f"s_mov_b32 s{base+3}, 0x20000")
    for base, src in ((20, 8), (24, 12), (28, 14), (32, 10), (36, 16)):
        e.i(f"s_mov_b32 s{base}, s{src}"); e.i(f"s_mov_b32 s{base+1}, s{src+1}")
    XR = 100
    e.i("v_lshlrev_b32 v3, 4, v0")
    e.i("s_mul_i32 s48, s45, 40960")
    for k in range(5):
        e.i(f"s_add_u32 s49, s48, {8192*k}")
        e.i(f"buffer_load_dwordx4 {vr(XR+4*k,4)}, v3, s[36:39], s49 offen")
    e.i("s_mul_i32 s48, s46, 40960")
    e.i("s_lshl_b32 s50, s47, 10")
    e.i("s_lshr_b32 s51, s47, 2")
    e.i("s_lshl_b32 s51, s51, 5")
    e.i("s_add_u32 s50, s50, s51")
    e.i(f"s_add_u32 s50, s50, {HB+32}")
    for k in range(5):
        e.i(f"s_add_u32 s49, s48, {8192*k}")
        e.i(f"s_add_u32 m0, s50, {(8192+64)*k}")
        e.i(f"buffer_load_dwordx4 v3, s[24:27], s49 offen lds")
    for k in range(5):
        e.i(f"v_add_u32 v4, {512*k}, v0")
        e.i("v_mul_u32_u24 v5, 13108, v4")
        e.i("v_lshrrev_b32 v5, 16, v5")
        e.i("v_mul_u32_u24 v6, 5, v5")
        e.i("v_sub_u32 v6, v4, v6")
        e.i(f"v_mul_u32_u24 v7, {2*XS}, v6")
        e.i(f"v_lshl_add_u32 v7, v5, 3, v7")
        e.i(f"v_add_u32 v{10+k}, {XB+XZ}, v7")
        e.i("v_mul_u32_u24 v7, 1280, v5")
        e.i(f"v_lshl_add_u32 v{15+k}, v6, 2, v7")
        e.i(f"v_add_u32 v{20+k}, v{15+k}, v7")
    QR = 26
    e.i("s_cmp_eq_u32 s44, 0")
    e.i("s_cselect_b32 s52, 0, 512")
    e.i("s_sub_u32 s53, 1536, s52")
    e.i("s_mul_i32 s54, s46, 20")
    for sp in range(2):
        e.i(f"s_mul_i32 s49, s{52+sp}, 1280")
        e.i("s_add_u32 s49, s49, s54")
        for k in range(5):
            e.i(f"buffer_load_dword v{QR+5*sp+k}, v{15+k}, s[20:23], s49 offen")
    e.i("v_mov_b32 v36, 0"); e.i("v_mov_b32 v37, 0")
    e.i("s_lshr_b32 s55, s47, 2")
    e.i("s_add_u32 s55, s55, 8")
    e.i("s_lshl_b32 s49, s47, 1"); e.i("s_add_u32 s49, s49, s54")
    e.i("v_mov_b32 v4, s49")
    e.i("s_lshl_b32 s49, s55, 1"); e.i("s_add_u32 s49, s49, s54")
    e.i("v_mov_b32 v5, s49")
    e.i("buffer_load_short_d16_hi v36, v4, s[28:31], 0 offen")
    e.i("buffer_load_short_d16_hi v37, v5, s[28:31], 0 offen")
    for r in range(4): e.i(f"v_mov_b32 v{60+r}, 0")
    e.i("v_lshrrev_b32 v4, 4, v0"); e.i("v_and_b32 v5, 15, v0")
    e.i(f"v_mul_u32_u24 v4, {XS}, v4"); e.i("v_lshl_add_u32 v4, v5, 4, v4")
    e.i("v_cmp_gt_u32 vcc, 160, v0")
    e.i("s_and_saveexec_b64 s[42:43], vcc")
    e.i(f"ds_write_b128 v4, v[60:63] offset:{XB}")
    e.i("s_mov_b64 exec, -1")
    e.i("v_lshrrev_b32 v4, 1, v0"); e.i("v_and_b32 v5, 1, v0")
    e.i(f"v_mul_u32_u24 v4, {HS}, v4"); e.i("v_lshl_add_u32 v4, v5, 4, v4")
    e.i(f"v_add_u32 v4, {HB}, v4")
    e.i("v_cmp_gt_u32 vcc, 20, v0")
    e.i("s_and_saveexec_b64 s[42:43], vcc")
    e.i(f"ds_write_b128 v4, v[60:63]")
    e.i("s_mov_b64 exec, -1")
    e.i(f"v_add_u32 v4, {ZB}, v3")
    e.i("v_cmp_gt_u32 vcc, 34, v0")
    e.i("s_and_saveexec_b64 s[42:43], vcc")
    e.i(f"ds_write_b128 v4, v[60:63]")
    e.i("s_mov_b64 exec, -1")
    e.i("v_lshrrev_b32 v4, 4, v2")
    e.i("v_bfe_u32 v5, v2, 2, 2")
    e.i("v_and_b32 v6, 3, v2")
    e.i("v_lshl_add_u32 v7, v4, 3, v5")
    e.i("v_lshlrev_b32 v8, 2, v6")
    e.i("v_sub_u32 v8, v8, v7")
    e.i("v_lshlrev_b32 v8, 3, v8")
    e.i(f"v_add_u32 v8, {XB+XZ+24-32}, v8")
    e.i("v_add_u32 v9, v6, v7")
    e.i("v_lshlrev_b32 v9, 3, v9")
    e.i(f"v_add_u32 v9, {HB+32-24}, v9")
    units = []
    for ui, (chs, base, dreg) in enumerate((("s55", 38, 37), ("s47", 45, 36))):
        e.i(f"s_mul_i32 s49, {chs}, {XS}")
        e.i(f"v_add_u32 v{base}, s49, v8")
        e.i(f"s_add_u32 s49, s49, {XB+XZ}")
        e.i(f"v_lshl_add_u32 v{base+2}, v2, 1, s49")
        e.i(f"s_mul_i32 s49, {chs}, {HS}")
        e.i(f"v_add_u32 v{base+1}, s49, v9")
        e.i(f"s_lshl_b32 s49, {chs}, 1")
        e.i(f"s_add_u32 s49, s49, {SB}")
        e.i(f"v_mul_u32_u24 v4, 20, v2")
        e.i(f"v_add_u32 v{base+3}, s49, v4")
        e.i(f"s_lshl_b32 s49, {chs}, 9")
        e.i(f"s_add_u32 s49, s49, {CB}")
        e.i(f"v_mov_b32 v{base+5}, s49")
        e.i(f"s_add_u32 s49, s49, 4")
        e.i(f"v_lshl_add_u32 v4, v2, 2, s49")
        e.i(f"v_mov_b32 v5, {ZB}")
        e.i("v_cmp_gt_u32 s[42:43], 3, v2")
        e.i(f"v_cndmask_b32 v{base+4}, v5, v4, s[42:43]")
        units.append(dict(ax=base, ah=base+1, axl=base+2, ast=base+3, acr=base+4, acw=base+5, dreg=dreg))
    for k in range(5):
        e.i(f"ds_write_b64 v{10+k}, {vr(XR+4*k,2)}")
        e.i(f"ds_write_b64 v{10+k}, {vr(XR+4*k+2,2)} offset:{XS}")
    e.wait(vm=0, lg=0)
    e.i("s_barrier")
    ACCQ, ACCF, POOL, POOLN = 52, 72, 140, 20
    e.i("s_and_b32 s49, s47, 3")
    e.i("s_lshl_b32 s50, s44, 2")
    e.i("s_add_u32 s49, s49, s50")
    for v in range(1, 8):
        e.i(f"s_cmp_eq_u32 s49, {v}")
        e.i(f"s_cbranch_scc1 L_var{v}")
    for ty in range(2):
        for qd in range(4):
            v = ty * 4 + qd
            e.label(f"L_var{v}")
            e.reset_state()
            uq = dict(units[0]); uf = dict(units[1])
            uq['tiles'] = QUART[ty][qd]; uq['acc'] = {t: ACCQ + 4*i for i, t in enumerate(uq['tiles'])}; uq['inline'] = False
            uf['tiles'] = TILES[ty]; uf['acc'] = {t: ACCF + 4*i for i, t in enumerate(uf['tiles'])}; uf['inline'] = True
            deferred = sched_units(e, ty, [uq, uf], POOL, POOLN)
            e.wait(lg=0)
            e.i("s_barrier")
            for o1, o2 in deferred:
                for f in o1: f()
            for o1, o2 in deferred:
                for f in o2: f()
            e.wait(lg=0)
            e.i("s_branch L_final")
    e.label("L_final")
    e.reset_state()
    e.i("s_barrier")
    e.i("v_lshlrev_b32 v4, 2, v0")
    e.i(f"v_add_u32 v4, {SB}, v4")
    e.i("v_mov_b32 v9, 0xffff0000")
    e.i("s_mul_i32 s54, s45, 20")
    Y = 60
    for sp in range(2):
        for k in range(5):
            e.i(f"ds_read_b32 v{Y+5*sp+k}, v4 offset:{10240*sp+2048*k}")
    for sp in range(2):
        e.i(f"s_mul_i32 s49, s{52+sp}, 2560")
        e.i("s_add_u32 s49, s49, s54")
        for k in range(5):
            y, q = Y + 5*sp + k, QR + 5*sp + k
            e.i(f"v_lshlrev_b32 v5, 16, v{y}")
            e.i(f"v_lshlrev_b32 v6, 16, v{q}")
            e.i(f"v_and_b32 v7, v9, v{y}")
            e.i(f"v_and_b32 v8, v9, v{q}")
            e.i("v_mul_f32 v5, v5, v6")
            e.i("v_mul_f32 v7, v7, v8")
            e.i(f"v_cvt_pk_bf16_f32 v{y}, v5, v7")
            e.i(f"buffer_store_dword v{y}, v{20+k}, s[32:35], s49 offen")
    e.label("L_k2_end")
    e.i("s_endpgm")
    return POOL + 4 * POOLN

def main(out):
    e = Emit()
    k1, k2 = "kvt_kernel", NAME + "_kernel"
    e.raw(HEADER.rstrip())
    e.raw(f"; @launch kernel={k1} grid=(640,1,1) block=(256,1,1) lds=0")
    e.raw(f"; @launch kernel={k2} grid=(256,1,1) block=(512,1,1) lds={LDS_TOTAL}")
    e.raw('.amdgcn_target "amdgcn-amd-amdhsa--gfx950"\n.text')
    n1 = gen_k1(e, k1)
    n2 = gen_k2(e, k2)
    e.raw('.section .rodata,"a"\n.p2align 6')
    e.raw(kd(k1, n1, 40))
    e.raw(".p2align 6")
    e.raw(kd(k2, n2, 64))
    open(out, "w").write(e.text())

if __name__ == "__main__":
    main(sys.argv[1] if len(sys.argv) > 1 else "cdna_kernels/" + NAME + ".s")
```

```python
import re

def vr(base, n=1):
    return f"v{base}" if n == 1 else f"v[{base}:{base+n-1}]"
def sr(base, n=1):
    return f"s{base}" if n == 1 else f"s[{base}:{base+n-1}]"
def R(kind, base, n=1):
    return [(kind, base + i) for i in range(n)]
def V(base, n=1): return R('v', base, n)
def S(base, n=1): return R('s', base, n)

class Emit:
    def __init__(self):
        self.lines = []
        self.reset_state()
    def reset_state(self):
        self.lg = []
        self.vm = []
        self.smem = False
        self.hist = []
    def save_state(self):
        return (list(self.lg), list(self.vm), self.smem, set(getattr(self, 'smem_regs', set())))
    def restore_state(self, st):
        self.lg, self.vm, self.smem, self.smem_regs = list(st[0]), list(st[1]), st[2], set(st[3])
        self.hist = []
        self.nop(1)
    def raw(self, text):
        self.lines.append(text)
    def comment(self, t):
        self.lines.append("    ; " + t)
    def label(self, name):
        self.lines.append(name + ":")
    def _slot(self, kind, reads, writes, n=1):
        for _ in range(n - 1):
            self.hist.append(('nop', (), ()))
        self.hist.append((kind, tuple(reads), tuple(writes)))
        if len(self.hist) > 40: self.hist = self.hist[-40:]
    def nop(self, n):
        while n > 0:
            k = min(n, 16)
            self.lines.append(f"    s_nop {k-1}")
            self._slot('nop', (), (), k)
            n -= k
    def wait(self, vm=None, lg=None):
        parts = []
        if vm is not None:
            parts.append(f"vmcnt({vm})")
            if len(self.vm) > vm: self.vm = self.vm[len(self.vm) - vm:] if vm else []
        if lg is not None:
            parts.append(f"lgkmcnt({lg})")
            if lg == 0: self.smem = False; self.smem_regs = set()
            if len(self.lg) > lg: self.lg = self.lg[len(self.lg) - lg:] if lg else []
        self.lines.append("    s_waitcnt " + " ".join(parts))
        self._slot('wait', (), ())
    def _need_waits(self, regs):
        regs = set(regs)
        vm = lg = None
        for i, d in enumerate(self.vm):
            if d & regs: vm = len(self.vm) - 1 - i
        for i, d in enumerate(self.lg):
            if d & regs: lg = len(self.lg) - 1 - i
        if self.smem and (getattr(self, 'smem_regs', set()) & regs): lg = 0
        if lg is not None and self.smem: lg = 0
        if vm is not None: vm = min(vm, 63)
        if lg is not None: lg = min(lg, 15)
        if vm is not None or lg is not None:
            self.wait(vm, lg)
    def _hazard(self, kind, reads, writes, srcc=()):
        need = 0
        rs, ws = set(reads), set(writes)
        for dist, (k, r, w) in enumerate(reversed(self.hist)):
            w = set(w); r_ = set(r)
            req = 0
            wv = {x for x in w if x[0] == 'v'}; wsg = {x for x in w if x[0] == 's'}
            if k == 'mfma':
                dset = wv
                if kind == 'mfma':
                    ab = rs - set(srcc)
                    if dset & ab: req = max(req, 8)
                    if dset & set(srcc) and dset != set(srcc): req = max(req, 6)
                    if (dset & ws) and dset != ws: req = max(req, 8)
                elif kind in ('valu', 'dpp', 'vmem', 'lds', 'readlane', 'permlane', 'trans'):
                    if dset & (rs | ws): req = max(req, 8)
            if k in ('valu', 'dpp', 'trans', 'permlane', 'readlane'):
                if kind == 'mfma' and wv & rs: req = max(req, 2)
                if kind == 'dpp' and wv & rs: req = max(req, 2)
                if kind == 'permlane' and wv & rs: req = max(req, 2)
                if kind == 'readlane' and wv & rs: req = max(req, 1)
                if wsg & rs:
                    if kind in ('vmem',): req = max(req, 5)
                    if kind in ('valu', 'dpp', 'trans'): req = max(req, 2)
                    if kind == 'readlane': req = max(req, 4)
                if k == 'trans' and kind in ('valu', 'dpp') and wv & rs: req = max(req, 1)
                if ('s', 'exec') in w:
                    if kind == 'dpp': req = max(req, 5)
                    if kind in ('mfma', 'readlane', 'permlane'): req = max(req, 4)
            if k == 'vmem_store_wide' and kind in ('valu', 'dpp', 'trans', 'lds', 'vmem', 'mfma'):
                if r_ & ws: req = max(req, 2)
            if k == 'salu' and ('s', 'm0') in w and ('s', 'm0') in rs: req = max(req, 1)
            if req > dist: need = max(need, req - dist)
        if need: self.nop(need)
    def op(self, kind, text, reads=(), writes=(), srcc=(), wide_store=False):
        reads = list(reads); writes = list(writes)
        self._need_waits(reads + writes)
        self._hazard(kind, reads, writes, srcc)
        self.lines.append("    " + text)
        if kind == 'lds':
            self.lg.append(set(writes))
        elif kind == 'vmem':
            self.vm.append(set(writes))
        elif kind == 'smem':
            self.smem = True
            self.smem_regs = getattr(self, 'smem_regs', set()) | set(writes)
        self._slot('vmem_store_wide' if wide_store else kind, reads, writes)
    _re = re.compile(r"\b([vs])(\d+)\b|\b([vs])\[(\d+):(\d+)\]|\b(vcc|exec|m0|scc)\b")
    @classmethod
    def regs_of(cls, s):
        out = []
        for m in cls._re.finditer(s):
            if m.group(1): out.append((m.group(1), int(m.group(2))))
            elif m.group(3): out += [(m.group(3), i) for i in range(int(m.group(4)), int(m.group(5)) + 1)]
            else: out.append(('s', m.group(6)))
        return out
    def i(self, text):
        t = text.strip()
        mn, _, rest = t.partition(" ")
        ops = [o.strip() for o in self._split(rest)]
        allr = [self.regs_of(o) for o in ops]
        flat = lambda l: [x for y in l for x in y]
        if mn.startswith("v_mfma"):
            self.op('mfma', t, reads=flat(allr[1:]), writes=allr[0], srcc=allr[3])
        elif mn.startswith("ds_read") :
            rd = flat(allr[1:]) + (allr[0] if "d16" in mn else [])
            self.op('lds', t, reads=rd, writes=allr[0])
        elif mn.startswith("ds_write") or mn.startswith("ds_add"):
            self.op('lds', t, reads=flat(allr), writes=[])
        elif mn.startswith("buffer_load") or mn.startswith("global_load"):
            if " lds" in t or "_lds_" in mn:
                self.op('vmem', t, reads=flat(allr) + [('s', 'm0')], writes=[])
            else:
                rd = flat(allr[1:]) + (allr[0] if "d16" in mn else [])
                self.op('vmem', t, reads=rd, writes=allr[0])
        elif mn.startswith("buffer_store") or mn.startswith("global_store") or mn.startswith("buffer_atomic") or mn.startswith("global_atomic"):
            wide = "x3" in mn or "x4" in mn
            self.op('vmem', t, reads=flat(allr), writes=[], wide_store=wide)
            if wide: pass
        elif mn.startswith("s_load") or mn.startswith("s_memtime") or mn.startswith("s_memrealtime") or mn.startswith("s_buffer_load"):
            self.op('smem', t, reads=flat(allr[1:]), writes=allr[0])
        elif mn in ("v_readfirstlane_b32", "v_readlane_b32"):
            self.op('readlane', t, reads=flat(allr[1:]), writes=allr[0])
        elif mn.startswith("v_permlane"):
            self.op('permlane', t, reads=flat(allr), writes=flat(allr))
        elif mn.startswith("v_cmp"):
            w = allr[0] + ([('s', 'exec')] if mn.startswith("v_cmpx") else [])
            self.op('valu', t, reads=flat(allr[1:]), writes=w)
        elif mn.startswith("v_"):
            kind = 'dpp' if "_dpp" in mn else 'valu'
            if re.match(r"v_(exp|log|rcp|rsq|sqrt|sin|cos)_", mn): kind = 'trans'
            rd = flat(allr[1:])
            if mn.startswith("v_fmac") or mn.startswith("v_dot2c") or "_dpp" in mn or mn.startswith("v_writelane") or "_sdwa" in mn: rd += allr[0]
            w = allr[0]
            if "_co_" in mn: w = allr[0] + allr[1]; rd = flat(allr[2:])
            self.op(kind, t, reads=rd, writes=w)
        elif mn.startswith("s_cmp") or mn.startswith("s_cbranch") or mn in ("s_branch", "s_barrier", "s_endpgm", "s_setprio", "s_sleep", "s_nop"):
            self.op('salu', t, reads=flat(allr), writes=[])
        elif mn.startswith("s_"):
            w = allr[0] + ([('s', 'exec')] if "saveexec" in mn else [])
            self.op('salu', t, reads=flat(allr[1:]), writes=w)
        elif mn.startswith("buffer_inv") or mn.startswith("buffer_wbl2"):
            self.op('vmem', t)
        else:
            raise ValueError("unknown instr " + t)
    @staticmethod
    def _split(rest):
        out, depth, cur = [], 0, ""
        for ch in rest:
            if ch == '[' or ch == '(': depth += 1
            if ch == ']' or ch == ')': depth -= 1
            if ch == ',' and depth == 0:
                out.append(cur); cur = ""
            else: cur += ch
        if cur.strip(): out.append(cur)
        return out
    def text(self):
        return "\n".join(self.lines) + "\n"

def kd(name, vgpr, sgpr=100, accum=None):
    accum = accum or ((vgpr + 3) // 4 * 4)
    return f""".amdhsa_kernel {name}
  .amdhsa_next_free_vgpr {vgpr}
  .amdhsa_next_free_sgpr {sgpr}
  .amdhsa_accum_offset {accum}
  .amdhsa_group_segment_fixed_size 0
  .amdhsa_kernarg_size 120
  .amdhsa_user_sgpr_count 2
  .amdhsa_user_sgpr_kernarg_segment_ptr 1
  .amdhsa_system_sgpr_workgroup_id_x 1
.end_amdhsa_kernel
"""
```

```python
import sys
from asmgen import *

NAME = "concat_heads__ssm_conv_h3__ssm_conv_h3__prompt"
HEADER = open("cdna_kernels/" + NAME + ".s.ref").read().split("; Override")[0]
OPT = set()
STAMPS = False
def opt(name, default=None):
    for o in OPT:
        if o == name: return True
        if o.startswith(name + "="): return o.split("=", 1)[1]
    return default

SST = 80
def stamp(e, idx, wait=True):
    if STAMPS:
        e.i(f"{'s_memtime' if opt('cyc') else 's_memrealtime'} s[{SST+2*idx}:{SST+1+2*idx}]")
        if wait: e.wait(lg=0)
def stamp_flush(e, n):
    if not STAMPS: return
    e.wait(vm=0, lg=0)
    stamp(e, n - 1)
    e.i("v_lshrrev_b32 v1, 6, v0")
    e.i(f"s_lshl_b32 s68, s2, 3")
    e.i("v_add_u32 v1, s68, v1")
    e.i("v_lshlrev_b32 v1, 6, v1")
    e.i(f"v_add_u32 v1, {16 << 20}, v1")
    e.i("v_and_b32 v2, 63, v0")
    e.i("v_cmp_eq_u32 vcc, 0, v2")
    e.i("s_and_saveexec_b64 s[68:69], vcc")
    for j in range(n):
        e.i(f"v_mov_b32 v2, s{SST+2*j}")
        e.i(f"buffer_store_dword v2, v1, s[36:39], 0 offen offset:{4*j}")

WS_X = 0
WS_F = 5242880
WS_E = WS_F + 16384
WS_SIZE = 32 << 20
class Lay: pass
BIG = Lay(); EAR = Lay()
BIG.nch, BIG.XS, BIG.HS, BIG.CHS = 8, 4368, 4128, 2112
EAR.nch, EAR.XS, EAR.HS, EAR.CHS = 16, 2304 + 256 + 16, 2304 + 32, 2624
for L in (BIG, EAR):
    L.XB = 0; L.HB = L.nch * L.XS; L.SB = L.HB + L.nch * L.HS; L.END = L.SB + L.nch * L.CHS
    assert L.XS % 64 == 16 and L.CHS % 256 == 64 and L.HB % 16 == 0 and L.SB % 16 == 0
XZ = 256
LDS_TOTAL = max(BIG.END, EAR.END)
BIG.tiles = list(range(17, 32)); BIG.carry_only = 17; BIG.q0 = 18
EAR.tiles = list(range(0, 18)); EAR.carry_only = None; EAR.q0 = 0

AX, AH, AXL, AST, DREG = 4, 5, 6, 7, 8
XV = 10
QR = 16
ACC = 36
POOL, POOLN = 108, 18
NVGPR = 184
M63 = "s[40:41]"

def sched_unit(e, L, look=6):
    look = int(opt('look', look))
    tiles = L.tiles
    acc = {t: ACC + 4 * i for i, t in enumerate(tiles)}
    mf = []
    for d in range(32):
        for t in sorted(t for t in tiles if t >= d and (t - d) % 2 == 0):
            mf.append((t, d, (t - d) // 2))
    uses = {}
    for n, (t, d, b) in enumerate(mf):
        uses.setdefault(('x', d), []).append(n); uses.setdefault(('h', b), []).append(n)
    inst = sorted([(ul[0], ul[-1], key) for key, ul in uses.items()])
    idx_of = {it[2]: k for k, it in enumerate(inst)}
    free = list(range(POOLN)); slot = {}; nxt = 0
    fillers = []; started = set(); seq = [0]
    last = {}
    for n, (t, d, b) in enumerate(mf): last[t] = n
    def add(when, f, valu=True):
        fillers.append((when, seq[0], f, valu)); seq[0] += 1
    def issue_load(k):
        kind, idx = inst[k][2]
        s = free.pop(0); slot[k] = s; r = POOL + 4 * s
        if kind == 'x':
            e.i(f"ds_read_b64_tr_b16 {vr(r,2)}, v{AX} offset:{128*idx+32}")
            e.i(f"ds_read_b64_tr_b16 {vr(r+2,2)}, v{AX} offset:{128*idx}")
        else:
            e.i(f"ds_read_b64_tr_b16 {vr(r,2)}, v{AH} offset:{256*idx}")
            e.i(f"ds_read_b64_tr_b16 {vr(r+2,2)}, v{AH} offset:{256*idx+32}")
    SHR = "wave_shr:1 row_mask:0xf bank_mask:0xf bound_ctrl:0"
    ROR = "wave_ror:1 row_mask:0xf bank_mask:0xf"
    tprev = [0]
    def epi(t, n):
        a = acc[t]; p = acc.get(t - 1)
        w = max(n + 4, tprev[0])
        xv = XV + (t & 3)
        if t != L.carry_only:
            add(n + 1, lambda: e.i(f"ds_read_u16_d16_hi v{xv}, v{AXL} offset:{128*t}"), False)
        for lv in ((3, 2, 1) if t != L.carry_only else (3, 2)):
            if p is not None:
                add(w, lambda lv=lv: e.i(f"v_cndmask_b32 v{p+lv}, v{a+lv}, v{p+lv}, {M63}")); w += 1
                add(w, lambda lv=lv: e.i(f"v_add_f32_dpp v{a+lv-1}, v{p+lv}, v{a+lv-1} {ROR}"))
            else:
                add(w, lambda lv=lv: e.i(f"v_add_f32_dpp v{a+lv-1}, v{a+lv}, v{a+lv-1} {SHR}")); w += 1
        tprev[0] = w
        if t == L.carry_only: return
        add(w, lambda: e.i(f"v_fmac_f32 v{a}, v{xv}, v{DREG}")); w += 1
        k = t - L.q0; q, j = k >> 2, k & 3
        a0 = acc[L.q0 + 4 * q]
        if j & 1:
            add(w, lambda: e.i(f"v_cvt_pk_bf16_f32 v{a0+2+(j>>1)}, v{acc[t-1]}, v{a}"))
            if j == 3:
                add(w + 1, lambda: e.i(f"ds_write_b64 v{AST}, {vr(a0+2,2)} offset:{512*q}"), False)
            elif t == tiles[-1]:
                add(w + 1, lambda: e.i(f"ds_write_b32 v{AST}, v{a0+2} offset:{512*q}"), False)
    for n, (t, d, b) in enumerate(mf):
        while nxt < len(inst) and (inst[nxt][0] <= n or (inst[nxt][0] <= n + look and free)):
            assert free, "fragment pool exhausted"
            issue_load(nxt); nxt += 1
        budget = 2
        fillers.sort(key=lambda x: (x[0], x[1]))
        while budget > 0 and fillers and fillers[0][0] <= n:
            f = fillers.pop(0); f[2]()
            if f[3]: budget -= 1
        kx, kh = idx_of[('x', d)], idx_of[('h', b)]
        a = acc[t]
        c = vr(a, 4) if t in started else "0"
        started.add(t)
        e.i(f"v_mfma_f32_16x16x32_bf16 {vr(a,4)}, {vr(POOL+4*slot[kx],4)}, {vr(POOL+4*slot[kh],4)}, {c}")
        for k in (kx, kh):
            if inst[k][1] == n: free.append(slot[k])
        if last[t] == n: epi(t, n)
    fillers.sort(key=lambda x: (x[0], x[1]))
    for f in fillers: f[2]()

def srd(e, base, src, size):
    e.i(f"s_mov_b32 s{base}, s{src}"); e.i(f"s_mov_b32 s{base+1}, s{src+1}")
    e.i(f"s_mov_b32 s{base+2}, {size}"); e.i(f"s_mov_b32 s{base+3}, 0x20000")

def gen(e, name):
    NT = " nt" if opt('nt', '1') == '1' else ""
    NTH = " nt" if opt('nth', '1') == '1' else ""
    NTQ = " nt" if opt('ntq', '0') == '1' else ""
    ST = {'sc1': ' sc1', 'plain': '', 'sc01': ' sc0 sc1', 'ntsc1': ' sc1 nt'}[opt('st', 'sc1')]
    LD = {'sc1': ' sc1', 'plain': '', 'sc01': ' sc0 sc1', 'sc0': ' sc0'}[opt('ld', 'sc1')]
    e.raw(f".globl {name}\n.p2align 8\n.type {name},@function\n{name}:")
    e.reset_state()
    e.i("s_cmp_ge_u32 s2, 256")
    e.i("s_cbranch_scc1 L_end")
    stamp(e, 0, False)
    e.i("s_and_b32 s3, s2, 7")
    e.i("s_lshr_b32 s6, s2, 3")
    e.i("s_lshr_b32 s7, s3, 2")
    e.i("s_mul_i32 s4, s7, 48")
    e.i("s_add_u32 s4, s0, s4")
    e.i("s_addc_u32 s5, s1, 0")
    e.i("s_load_dwordx8 s[8:15], s[4:5], 0")
    e.i("s_load_dwordx4 s[16:19], s[4:5], 32")
    e.i("s_load_dwordx2 s[42:43], s[0:1], 96")
    e.i("s_load_dwordx2 s[44:45], s[0:1], 112")
    e.i("v_lshrrev_b32 v1, 6, v0")
    e.i("v_and_b32 v2, 63, v0")
    e.i("v_readfirstlane_b32 s47, v1")
    e.i("s_and_b32 s46, s3, 3")
    e.i("s_mul_i32 s48, s46, 320")
    e.i("s_cmp_ge_u32 s47, 5")
    e.i("s_cbranch_scc1 L_helper")
    e.i("v_bfe_u32 v3, v2, 2, 2")
    e.i("v_lshrrev_b32 v4, 4, v2")
    e.i("v_and_b32 v5, 3, v2")
    e.i("v_lshlrev_b32 v6, 2, v5")
    e.i("v_lshl_add_u32 v6, v4, 4, v6")
    e.i("s_lshl_b32 s49, s47, 6")
    e.i("s_add_u32 s49, s49, s48")
    e.i("v_add_u32 v6, s49, v6")
    e.i("v_mul_u32_u24 v7, 5120, v3")
    e.i("s_mul_i32 s50, s6, 20480")
    e.i("v_add3_u32 v7, v7, v6, s50")
    e.i("v_lshlrev_b32 v6, 2, v6")
    e.wait(lg=0)
    srd(e, 20, 10, 2621440)
    srd(e, 24, 12, 2621440)
    srd(e, 28, 14, 5120)
    srd(e, 36, 44, WS_SIZE)
    KR, VR, WR = 40, 68, 84
    e.i(f"buffer_load_dwordx4 {vr(WR,4)}, v6, s[28:31], 0 offen")
    for c in range(4):
        e.i(f"v_add_u32 v{8+c}, {(c*655360-3840) & 0xffffffff}, v7")
        if c: e.i(f"s_mov_b32 s{50+c}, {c*655360}")
        so = f"s{50+c}" if c else "0"
        for r in range(3): e.i(f"buffer_load_dword v{KR+7*c+r}, v{8+c}, s[20:23], 0 offen offset:{1280*r}{NT}")
        for r in range(4): e.i(f"buffer_load_dword v{KR+7*c+3+r}, v7, s[20:23], {so} offen offset:{1280*r}{NT}")
        for r in range(4): e.i(f"buffer_load_dword v{VR+4*c+r}, v7, s[24:27], {so} offen offset:{1280*r}{NT}")
    stamp(e, 8)
    e.i("s_lshl_b32 s54, s3, 7")
    e.i(f"s_add_u32 s54, s54, {WS_E}")
    e.i("s_add_u32 s56, s44, s54"); e.i("s_addc_u32 s57, s45, 0")
    e.i("s_load_dwordx2 s[58:59], s[56:57], 0")
    e.i("s_mul_i32 s54, s3, 20"); e.i("s_lshl_b32 s55, s47, 2"); e.i("s_add_u32 s54, s54, s55")
    e.i("s_lshl_b32 s54, s54, 15"); e.i("s_lshl_b32 s55, s6, 8"); e.i("s_add_u32 s54, s54, s55")
    e.i("v_lshlrev_b32 v12, 15, v4")
    e.i("v_lshl_add_u32 v12, v3, 6, v12")
    e.i("v_lshl_add_u32 v12, v5, 4, v12")
    e.i("v_add_u32 v12, s54, v12")
    e.i("v_mov_b32 v13, 0xffff0000")
    e.wait(lg=0)
    e.i("s_barrier")
    stamp(e, 1)
    WF, KF, AC, OUT = 88, 96, 104, 108
    def unpack(dst, src, hi):
        if hi: e.i(f"v_and_b32 v{dst}, v13, v{src}")
        else: e.i(f"v_lshlrev_b32 v{dst}, 16, v{src}")
    for ch in range(2):
        for t in range(4): unpack(WF + 4*ch + t, WR + 2*ch + (t >> 1), t & 1)
    for c in range(4):
        for ch in range(2):
            for r in range(7): unpack(KF + r, KR + 7*c + r, ch)
            for r in range(4): e.i(f"v_mul_f32 v{AC+r}, v{KF+r}, v{WF+4*ch+3}")
            for t in (2, 1, 0):
                for r in range(4): e.i(f"v_fmac_f32 v{AC+r}, v{KF+r+3-t}, v{WF+4*ch+t}")
            for r in range(4): unpack(KF + r, VR + 4*c + r, ch)
            for r in range(4): e.i(f"v_mul_f32 v{AC+r}, v{AC+r}, v{KF+r}")
            e.i(f"v_cvt_pk_bf16_f32 v{OUT+4*c+2*ch}, v{AC}, v{AC+1}")
            e.i(f"v_cvt_pk_bf16_f32 v{OUT+4*c+2*ch+1}, v{AC+2}, v{AC+3}")
        if c: e.i(f"s_mov_b32 s50, {8192*c}")
        e.i(f"buffer_store_dwordx4 {vr(OUT+4*c,4)}, v12, s[36:39], {'s50' if c else '0'} offen{ST}")
        if c == 0: stamp(e, 2)
    def mktag():
        e.i("s_mul_i32 s60, s58, 0x9E3779B1"); e.i("s_add_u32 s60, s60, 0x7F4A7C15")
        e.i("s_mul_i32 s61, s59, 0x85EBCA6B"); e.i("s_add_u32 s61, s61, 0x165667B1")
    mktag()
    e.i("s_mul_i32 s54, s3, 5"); e.i("s_add_u32 s54, s54, s47"); e.i("s_lshl_b32 s54, s54, 5")
    e.i("s_add_u32 s54, s54, s6"); e.i("s_lshl_b32 s54, s54, 3"); e.i(f"s_add_u32 s54, s54, {WS_F}")
    e.i("v_mov_b32 v14, s60"); e.i("v_mov_b32 v15, s61"); e.i("v_mov_b32 v3, s54")
    e.wait(vm=0)
    stamp(e, 3)
    e.i("s_mov_b64 exec, 1")
    e.i(f"buffer_store_dwordx2 v[14:15], v3, s[36:39], 0 offen{ST}")
    e.i("s_mov_b64 exec, -1")
    e.i("s_branch L_join")
    e.label("L_helper")
    e.reset_state()
    e.wait(lg=0)
    srd(e, 36, 44, WS_SIZE)
    srd(e, 20, 16, 2621440)
    e.i("s_lshl_b32 s54, s3, 7")
    e.i(f"s_add_u32 s54, s54, {WS_E}")
    e.i("s_add_u32 s56, s44, s54"); e.i("s_addc_u32 s57, s45, 0")
    e.i("s_load_dwordx2 s[58:59], s[56:57], 0")
    e.i("v_lshlrev_b32 v3, 4, v2")
    e.i("s_sub_u32 s49, s47, 5")
    for r in range(4): e.i(f"v_mov_b32 v{60+r}, 0")
    e.i("s_cmp_ge_u32 s6, 30")
    e.i("s_cbranch_scc1 L_hdone")
    e.i("s_cmp_ge_u32 s6, 20")
    e.i("s_cbranch_scc1 L_hear")
    e.i("s_mul_i32 s50, s46, 160"); e.i("s_lshl_b32 s51, s6, 3"); e.i("s_add_u32 s50, s50, s51")
    e.i("s_lshl_b32 s50, s50, 12")
    e.i("s_mov_b32 s51, s49")
    e.label("L_hb_loop")
    e.i("s_lshl_b32 s52, s51, 10")
    e.i("s_lshr_b32 s53, s51, 2"); e.i("s_lshl_b32 s53, s53, 5")
    e.i("s_add_u32 s53, s53, s52")
    e.i(f"s_add_u32 m0, s53, {BIG.HB+32}")
    e.i("s_add_u32 s52, s52, s50")
    e.i(f"buffer_load_dwordx4 v3, s[20:23], s52 offen{NTH} lds")
    e.i("s_add_u32 s51, s51, 3")
    e.i("s_cmp_lt_u32 s51, 32")
    e.i("s_cbranch_scc1 L_hb_loop")
    def zero_fill(L):
        e.i("v_subrev_u32 v4, 320, v0")
        for base in range(0, L.nch * 16, 192):
            e.i(f"v_add_u32 v5, {base}, v4")
            e.i("v_lshrrev_b32 v6, 4, v5"); e.i("v_and_b32 v7, 15, v5")
            e.i(f"v_mul_u32_u24 v6, {L.XS}, v6"); e.i("v_lshl_add_u32 v6, v7, 4, v6")
            e.i(f"v_cmp_gt_u32 vcc, {L.nch*16}, v5")
            e.i("s_and_saveexec_b64 s[62:63], vcc")
            e.i(f"ds_write_b128 v6, v[60:63] offset:{L.XB}")
            e.i("s_mov_b64 exec, -1")
        e.i("v_lshrrev_b32 v6, 1, v4"); e.i("v_and_b32 v7, 1, v4")
        e.i(f"v_mul_u32_u24 v6, {L.HS}, v6"); e.i("v_lshl_add_u32 v6, v7, 4, v6")
        e.i(f"v_cmp_gt_u32 vcc, {L.nch*2}, v4")
        e.i("s_and_saveexec_b64 s[62:63], vcc")
        e.i(f"ds_write_b128 v6, v[60:63] offset:{L.HB}")
        e.i("s_mov_b64 exec, -1")
    zero_fill(BIG)
    e.i("s_branch L_hdone")
    e.label("L_hear")
    e.i("s_mul_i32 s50, s46, 160"); e.i("s_sub_u32 s51, s6, 20"); e.i("s_lshl_b32 s51, s51, 4"); e.i("s_add_u32 s50, s50, s51")
    e.i("s_lshl_b32 s50, s50, 12")
    e.i("s_lshl_b32 s52, s49, 10")
    e.i("s_add_u32 s50, s50, s52")
    e.i(f"s_add_u32 s53, s52, {EAR.HB+32}")
    e.i("s_cmp_eq_u32 s49, 2")
    e.i("s_cselect_b64 s[62:63], 0xffff, -1")
    e.i("s_mov_b64 exec, s[62:63]")
    e.i("s_mov_b32 s51, 0")
    e.label("L_he_loop")
    e.i("s_mov_b32 m0, s53")
    e.i("s_add_u32 s53, s53, %d" % EAR.HS)
    e.i(f"buffer_load_dwordx4 v3, s[20:23], s50 offen{NTH} lds")
    e.i("s_add_u32 s50, s50, 4096")
    e.i("s_add_u32 s51, s51, 1")
    e.i("s_cmp_lt_u32 s51, 16")
    e.i("s_cbranch_scc1 L_he_loop")
    e.i("s_mov_b64 exec, -1")
    zero_fill(EAR)
    e.label("L_hdone")
    e.reset_state()
    stamp(e, 8)
    e.wait(lg=0)
    e.i("s_barrier")
    stamp(e, 1); stamp(e, 2); stamp(e, 3)
    mktag()
    e.label("L_join")
    e.reset_state()
    e.i("s_cmp_ge_u32 s6, 30")
    e.i("s_cbranch_scc1 L_fin")
    srd(e, 20, 8, 2621440)
    srd(e, 24, 18, 1280)
    srd(e, 28, 42, 5242880)
    e.i("s_mov_b32 s40, 0"); e.i("s_mov_b32 s41, 0x80000000")
    e.i("v_lshrrev_b32 v3, 4, v2")
    e.i("v_bfe_u32 v14, v2, 2, 2")
    e.i("v_and_b32 v15, 3, v2")
    for r in range(4): e.i(f"v_mov_b32 v{XV+r}, 0")
    e.i(f"v_mov_b32 v{DREG}, 0"); e.i(f"v_mov_b32 v{DREG+1}, 0")
    e.i("s_cmp_ge_u32 s6, 20")
    e.i("s_cbranch_scc1 L_ear")
    for L, lab in ((BIG, "big"), (EAR, "ear")):
        big = L is BIG
        if not big:
            e.label("L_ear"); e.reset_state()
        if big: e.i("s_mov_b32 s49, s6")
        else: e.i("s_sub_u32 s49, s6, 20"); e.i("s_lshl_b32 s49, s49, 1")
        e.i("s_lshr_b32 s50, s49, 2")
        e.i("s_mul_i32 s54, s3, 5"); e.i("s_add_u32 s54, s54, s50"); e.i("s_lshl_b32 s54, s54, 5")
        e.i("s_lshl_b32 s55, s47, 2"); e.i("s_add_u32 s54, s54, s55"); e.i("s_lshl_b32 s54, s54, 3"); e.i(f"s_add_u32 s54, s54, {WS_F}")
        e.i("v_lshl_add_u32 v66, v15, 3, s54")
        e.i("s_and_b32 s51, s47, 3"); e.i("s_lshr_b32 s52, s47, 2")
        e.i("v_lshlrev_b32 v1, 6, v15"); e.i("v_lshl_add_u32 v1, v3, 2, v1"); e.i("v_add_u32 v1, v1, v14")
        e.i("s_lshl_b32 s53, s51, 4")
        if big:
            e.i("s_lshl_b32 s55, s52, 8"); e.i("s_add_u32 s53, s53, s55"); e.i(f"s_add_u32 s53, s53, {64*L.q0}")
        e.i("v_add_u32 v1, s53, v1")
        if big: e.i("s_lshl_b32 s53, s49, 4")
        else: e.i("s_add_u32 s53, s49, s52"); e.i("s_lshl_b32 s53, s53, 4")
        e.i("s_add_u32 s64, s53, s48")
        e.i("s_mul_i32 s65, s3, 320"); e.i("s_add_u32 s65, s65, s53")
        e.i("v_mul_u32_u24 v62, 1280, v1")
        e.i("v_add_u32 v63, v62, v62")
        e.i("v_add_u32 v62, s64, v62")
        e.i(f"v_add_u32 v{DREG+1}, s65, v63")
        nk = 2 if big else 5
        kstep = 512 if big else 256
        e.i("v_mov_b32 v67, v62")
        D2 = 180
        def q_loads():
            for k in range(nk):
                if k: e.i(f"s_mov_b32 s55, {k*kstep*1280}")
                e.i(f"buffer_load_dwordx4 {vr(QR+4*k,4)}, v67, s[20:23], {'s55' if k else '0'} offen{NTQ}")
        def d_loads():
            e.i("s_lshl_b32 s53, s49, 4"); e.i("s_add_u32 s53, s53, s48"); e.i("s_lshl_b32 s55, s47, 1"); e.i("s_add_u32 s53, s53, s55")
            e.i("v_mov_b32 v1, s53")
            e.i(f"buffer_load_short_d16_hi v{DREG}, v1, s[24:27], 0 offen")
            if not big:
                e.i(f"v_mov_b32 v{D2}, 0")
                e.i(f"buffer_load_short_d16_hi v{D2}, v1, s[24:27], 0 offen offset:16")
        d_loads()
        e.i("v_lshl_add_u32 v1, v3, 3, v14")
        e.i(f"s_mul_i32 s53, s47, {L.XS}")
        e.i(f"s_add_u32 s53, s53, {L.XB+XZ}")
        e.i(f"v_lshl_add_u32 v{AXL}, v2, 1, s53")
        e.i("v_lshlrev_b32 v62, 2, v15"); e.i("v_sub_u32 v62, v62, v1")
        e.i("s_sub_u32 s53, s53, 8")
        e.i(f"v_lshl_add_u32 v{AX}, v62, 3, s53")
        e.i(f"s_mul_i32 s53, s47, {L.HS}"); e.i(f"s_add_u32 s53, s53, {L.HB+8}")
        e.i("v_add_u32 v62, v15, v1")
        e.i(f"v_lshl_add_u32 v{AH}, v62, 3, s53")
        e.i(f"s_mul_i32 s53, s47, {L.CHS}"); e.i(f"s_add_u32 s53, s53, {L.SB}")
        e.i(f"v_lshl_add_u32 v{AST}, v2, 3, s53")
        e.i("s_mul_i32 s53, s3, 20"); e.i("s_add_u32 s53, s53, s49"); e.i("s_lshl_b32 s53, s53, 15")
        e.i("v_lshl_add_u32 v62, v0, 4, s53")
        e.i(f"v_mul_u32_u24 v63, {2*L.XS}, v15")
        e.i("v_lshrrev_b32 v1, 2, v0")
        e.i("v_lshl_add_u32 v63, v1, 3, v63")
        e.i(f"v_add_u32 v63, {L.XB+XZ}, v63")
        e.i("s_mov_b32 s55, 0")
        e.label(f"L_poll_{lab}")
        e.reset_state()
        e.i("buffer_load_dwordx2 v[64:65], v66, s[36:39], 0 offen sc1")
        e.wait(vm=0)
        e.i("v_cmp_ne_u64 vcc, s[60:61], v[64:65]")
        e.i("s_add_u32 s55, s55, 1")
        e.i("s_cmp_gt_u32 s55, 0x40000")
        e.i(f"s_cbranch_scc1 L_pdone_{lab}")
        if opt('sleep'): e.i(f"s_sleep {opt('sleep')}")
        e.i("s_cmp_lg_u64 vcc, 0")
        e.i(f"s_cbranch_scc1 L_poll_{lab}")
        e.label(f"L_pdone_{lab}")
        e.reset_state()
        stamp(e, 4)
        XR = 68
        if big:
            pieces = [(0, c) for c in range(4)]
        else:
            pieces = [(g, c) for g in range(2) for c in range(2)]
        if not big:
            e.i("s_cmp_ge_u32 s47, 2")
            e.i("s_cbranch_scc1 L_skipx")
            for g in range(2):
                e.i(f"s_mov_b32 s55, {g*32768 + 2*8192}")
                e.i(f"buffer_load_dwordx4 {vr(XR+16+4*g,4)}, v62, s[36:39], s55 offen{LD}")
            e.label("L_skipx")
            e.reset_state()
        for n, (g, c) in enumerate(pieces):
            e.i(f"s_mov_b32 s55, {g*32768 + c*8192}")
            e.i(f"buffer_load_dwordx4 {vr(XR+4*n,4)}, v62, s[36:39], s55 offen{LD}")
        for n, (g, c) in enumerate(pieces):
            o = g * 8 * L.XS + c * 1024
            e.i(f"ds_write_b64 v63, {vr(XR+4*n,2)} offset:{o}")
            e.i(f"ds_write_b64 v63, {vr(XR+4*n+2,2)} offset:{o+L.XS}")
        if not big:
            e.i("s_cmp_ge_u32 s47, 2")
            e.i("s_cbranch_scc1 L_skipx2")
            for g in range(2):
                o = g * 8 * L.XS + 2 * 1024
                e.i(f"ds_write_b64 v63, {vr(XR+16+4*g,2)} offset:{o}")
                e.i(f"ds_write_b64 v63, {vr(XR+16+4*g+2,2)} offset:{o+L.XS}")
            e.label("L_skipx2")
        e.wait(vm=0, lg=0)
        e.i("s_barrier")
        stamp(e, 5)
        q_loads()
        if big:
            e.i("s_or_b32 s55, s6, s47")
            e.i("s_cmp_lg_u32 s55, 0")
            e.i("s_cbranch_scc1 L_noep")
            e.i("s_lshl_b32 s54, s3, 7"); e.i(f"s_add_u32 s54, s54, {WS_E}")
            e.i("v_mov_b32 v64, s60"); e.i("v_mov_b32 v65, s61"); e.i("v_mov_b32 v1, s54")
            e.i("s_mov_b64 exec, 1")
            e.i("buffer_store_dwordx2 v[64:65], v1, s[36:39], 0 offen")
            e.i("s_mov_b64 exec, -1")
            e.label("L_noep")
            e.reset_state()
            sched_unit(e, L)
        else:
            e.i("s_mov_b32 s66, 0")
            e.label("L_ear_loop")
            e.reset_state()
            sched_unit(e, L)
            e.i(f"v_add_u32 v{AX}, {8*L.XS}, v{AX}"); e.i(f"v_add_u32 v{AXL}, {8*L.XS}, v{AXL}")
            e.i(f"v_add_u32 v{AH}, {8*L.HS}, v{AH}"); e.i(f"v_add_u32 v{AST}, {8*L.CHS}, v{AST}")
            e.i(f"v_mov_b32 v{DREG}, v{D2}")
            e.wait(lg=0)
            e.i("s_add_u32 s66, s66, 1")
            e.i("s_cmp_lt_u32 s66, 2")
            e.i("s_cbranch_scc1 L_ear_loop")
        e.wait(lg=0)
        stamp(e, 6)
        e.i("s_barrier")
        stamp(e, 7)
        e.i(f"v_mul_u32_u24 v1, {L.CHS}, v14")
        e.i("v_lshl_add_u32 v4, v3, 2, v15")
        e.i("v_lshl_add_u32 v1, v4, 3, v1")
        e.i("s_lshl_b32 s53, s51, 7")
        if big: e.i("s_lshl_b32 s55, s52, 9")
        else: e.i(f"s_mul_i32 s55, s52, {8*L.CHS}")
        e.i("s_add_u32 s53, s53, s55"); e.i(f"s_add_u32 s53, s53, {L.SB}")
        e.i("v_add_u32 v1, s53, v1")
        e.i("v_mov_b32 v13, 0xffff0000")
        e.wait(vm=0)
        Y = 40
        for k in range(nk):
            qo = (1024 if big else 512) * k
            e.i(f"ds_read_b64_tr_b16 {vr(Y+4*k,2)}, v1 offset:{qo}")
            e.i(f"ds_read_b64_tr_b16 {vr(Y+4*k+2,2)}, v1 offset:{qo+4*L.CHS}")
        for k in range(nk):
            for r in range(4):
                y, q = Y + 4*k + r, QR + 4*k + r
                e.i(f"v_lshlrev_b32 v4, 16, v{y}")
                e.i(f"v_lshlrev_b32 v5, 16, v{q}")
                e.i(f"v_and_b32 v6, v13, v{y}")
                e.i(f"v_and_b32 v7, v13, v{q}")
                e.i("v_mul_f32 v4, v4, v5")
                e.i("v_mul_f32 v6, v6, v7")
                e.i(f"v_cvt_pk_bf16_f32 v{y}, v4, v6")
            if k: e.i(f"s_mov_b32 s55, {k*kstep*2560}")
            if not big and k == 4:
                e.i("s_mov_b32 s62, 0x33333333"); e.i("s_mov_b32 s63, 0x33333333"); e.i("s_mov_b64 exec, s[62:63]")
            e.i(f"buffer_store_dwordx4 {vr(Y+4*k,4)}, v{DREG+1}, s[28:31], {'s55' if k else '0'} offen")
        e.i("s_mov_b64 exec, -1")
        if big: e.i("s_branch L_fin")
    e.label("L_fin")
    e.reset_state()
    stamp_flush(e, 10)
    e.label("L_end")
    e.i("s_endpgm")

def main(out):
    e = Emit()
    k = NAME + "_kernel"
    e.raw(HEADER.rstrip())
    e.raw(f"; @launch grid=(256,1,1) block=(512,1,1) lds={LDS_TOTAL}")
    e.raw('.amdgcn_target "amdgcn-amd-amdhsa--gfx950"\n.text')
    gen(e, k)
    e.raw('.section .rodata,"a"\n.p2align 6')
    e.raw(kd(k, NVGPR, 102))
    open(out, "w").write(e.text())

if __name__ == "__main__":
    OPT = set(sys.argv[2:])
    STAMPS = bool(opt('stamps'))
    main(sys.argv[1])
```
